```python
import torch

def _softmax(x, axis=-1):
    return torch.softmax(x, dim=axis)
def _gelu(x):
    return torch.nn.functional.gelu(x, approximate="tanh")
def _silu(x):
    return torch.nn.functional.silu(x)
def _sigmoid(x):
    return torch.sigmoid(x)
def _layernorm(x, axis=-1, eps=1e-5):
    m = x.mean(dim=axis, keepdim=True)
    v = x.var(dim=axis, keepdim=True, unbiased=False)
    return (x - m) / torch.sqrt(v + eps)
def _scatter_add(tgt, idx, src, axis=0):
    return tgt.clone().index_add_(axis, idx, src)
def _segment_sum(src, seg, n):
    out = torch.zeros((n,) + src.shape[1:], dtype=src.dtype)
    return out.index_add_(0, seg, src)
def _pad(x, pw):
    flat = tuple(v for pair in reversed(pw) for v in pair)
    return torch.nn.functional.pad(x, flat)

kernel_name = 'standalone__dense_activation_relu__prompt'

def setup_inputs():

    _w = (lambda a: (lambda t: t.to(torch.bfloat16) if t.is_floating_point() else t)(torch.as_tensor(a)))
    B, S, D, Dff = 1, 2048, 448, 1792
    return {
        "x": _w((lambda *s: torch.randn(*s, dtype=torch.bfloat16) * 0.05)(B, S, D)),
        "w1": _w((lambda *s: torch.randn(*s, dtype=torch.bfloat16) * 0.05)(D, Dff)),
        "w2": _w((lambda *s: torch.randn(*s, dtype=torch.bfloat16) * 0.05)(Dff, D)),
    }

def reference(x, w1, w2):
    h = torch.einsum("bsd,df->bsf", x, w1)
    zero = torch.zeros_like(h)
    h = torch.maximum(h, zero)
    return torch.einsum("bsf,fd->bsd", h, w2)
```

```python
import sys

NAME = "standalone__dense_activation_relu__prompt"
HBYTES = 2048 * 1792 * 2


def gen(D=3, stamps=False, name=NAME, out_sc="", clear_at=3, spin_max=200000, opts=None):
    o = dict(opts or {})
    L = []
    A = L.append
    nstamp = [0]

    def stamp():
        if stamps:
            k = nstamp[0]
            A(f"  s_memtime s[{70+2*k}:{71+2*k}]")
            A("  s_waitcnt lgkmcnt(0)")
            nstamp[0] += 1

    A("; @launch grid=(224,1,1) block=(512,1,1) lds=163840")
    A('.amdgcn_target "amdgcn-amd-amdhsa--gfx950"')
    A(".text")
    A(f".globl {name}_kernel")
    A(".p2align 8")
    A(f".type {name}_kernel,@function")
    A(f"{name}_kernel:")
    A("  s_cmp_ge_u32 s2, 224")
    A("  s_cbranch_scc1 L_end")
    A("  s_load_dwordx8 s[36:43], s[0:1], 0")
    A("  s_load_dwordx4 s[44:47], s[0:1], 32")
    if stamps:
        A("  s_memtime s[68:69]")
        A("  s_memrealtime s[66:67]")
    A("  v_and_b32 v1, 63, v0")
    A("  v_lshrrev_b32 v2, 6, v0")
    A("  s_and_b32 s48, s2, 7")
    A("  v_readfirstlane_b32 s3, v2")
    A("  s_lshr_b32 s49, s2, 3")
    A("  s_mul_i32 s50, s49, 37")
    A("  s_lshr_b32 s50, s50, 8")
    A("  s_mul_i32 s51, s50, 7")
    A("  s_sub_u32 s51, s49, s51")
    A("  s_lshr_b32 s52, s48, 1")
    A("  s_lshl_b32 s52, s52, 2")
    A("  s_add_u32 s52, s52, s50")
    A("  s_and_b32 s53, s48, 1")
    A("  s_mul_i32 s53, s53, 7")
    A("  s_add_u32 s53, s53, s51")
    A("  s_lshl_b32 s54, s48, 2")
    A("  s_add_u32 s54, s54, s50")
    A("  s_lshl_b32 s55, s50, 1")
    A("  s_add_u32 s55, s55, s51")
    A("  s_add_u32 s55, s55, s48")
    A("  s_mul_i32 s56, s55, 37")
    A("  s_lshr_b32 s56, s56, 8")
    A("  s_mul_i32 s56, s56, 7")
    A("  s_sub_u32 s55, s55, s56")
    if o.get("norot"):
        A("  s_mov_b32 s55, 0")
    A("  s_cmp_ge_u32 s3, 4")
    A("  s_cbranch_scc1 L_loader")

    A("  v_lshrrev_b32 v2, 5, v1")
    A("  v_and_b32 v3, 31, v1")
    A("  s_and_b32 s57, s3, 1")
    A("  s_lshr_b32 s58, s3, 1")
    A("  v_bfe_u32 v4, v1, 2, 2")
    A("  v_lshlrev_b32 v4, 6, v4")
    A("  v_bfe_u32 v5, v1, 4, 1")
    A("  v_lshl_add_u32 v4, v5, 5, v4")
    A("  v_and_b32 v5, 3, v1")
    A("  v_lshl_add_u32 v4, v5, 3, v4")
    A("  s_lshl_b32 s59, s57, 9")
    A("  s_add_u32 s59, s59, 16384")
    A("  v_lshl_add_u32 v6, v2, 11, v4")
    A("  v_add_u32 v6, s59, v6")
    A("  v_bfe_u32 v5, v1, 1, 3")
    A("  v_xor_b32 v5, v5, v2")
    A("  v_lshlrev_b32 v5, 4, v5")
    A("  v_lshl_add_u32 v7, v3, 7, v5")
    A("  s_lshl_b32 s59, s58, 13")
    A("  v_add_u32 v7, s59, v7")
    A("  v_xor_b32 v8, 32, v7")
    A("  v_xor_b32 v9, 64, v7")
    A("  v_xor_b32 v10, 0x60, v7")
    A("  s_lshl_b32 s59, s57, 14")
    A("  v_lshl_add_u32 v11, v2, 9, v4")
    A("  v_add_u32 v11, s59, v11")
    A("  v_add_u32 v12, 0x10000, v11")
    A("  v_add_u32 v13, 0x20000, v11")
    A("  v_lshlrev_b32 v14, 4, v1")
    A("  v_add_u32 v15, 0x1000, v14")
    A("  s_lshl_b32 s60, s52, 2")
    A("  s_lshl_b32 s59, s58, 1")
    A("  s_add_u32 s60, s60, s59")
    A("  s_mul_i32 s60, s60, 112")
    A("  s_lshl_b32 s59, s53, 3")
    A("  s_add_u32 s60, s60, s59")
    A("  s_lshl_b32 s59, s57, 2")
    A("  s_add_u32 s60, s60, s59")
    A("  s_lshl_b32 s60, s60, 10")
    A(f"  s_add_u32 s61, s60, {112*1024}")
    for k in range(4):
        A(f"  v_mov_b32 v{240+k}, -1")
    A("  s_waitcnt lgkmcnt(0)")
    A("  s_mov_b32 s28, s46")
    A("  s_mov_b32 s29, s47")
    A(f"  s_mov_b32 s30, {HBYTES + (1 << 20 if stamps else 0)}")
    A("  s_mov_b32 s31, 0x20000")
    A("  s_mov_b32 s24, s44")
    A("  s_mov_b32 s25, s45")
    A("  s_mov_b32 s26, 256")
    A("  s_mov_b32 s27, 0x20000")
    A("  s_mov_b32 s20, s42")
    A("  s_mov_b32 s21, s43")
    A("  s_mov_b32 s22, 1835008")
    A("  s_mov_b32 s23, 0x20000")
    if o.get("clear_delay"):
        A(f"  s_sleep {o['clear_delay']}")
    for b in range(2):
        for q in range(4):
            A(f"  buffer_store_dwordx4 v[240:243], v14, s[28:31], s{60+b} offen offset:{q*1024} sc1")
    for k in range(64):
        A(f"  v_mov_b32 v{16+k}, 0")
    A("  s_lshl_b32 s59, s52, 4")
    A("  v_mov_b32 v244, 0x1000")
    A("  v_mov_b32 v246, s59")
    A("  v_cmp_eq_u32 vcc, 0, v1")
    A("  v_mov_b32 v245, 1")
    A("  s_nop 0")
    A("  v_cndmask_b32 v244, v244, v246, vcc")
    A("  s_lshl_b32 s62, s54, 1")
    A("  s_add_u32 s62, s62, s58")
    A("  s_mul_i32 s62, s62, 112")
    A("  s_mul_i32 s59, s57, 56")
    A("  s_add_u32 s62, s62, s59")
    A("  s_lshl_b32 s62, s62, 10")
    hs = [4, 5, 6, 7, 32, 33, 34]
    A("  s_mov_b32 s63, s55")
    for n in range(7):
        A("  s_lshl_b32 s59, s63, 13")
        A(f"  s_add_u32 s{hs[n]}, s62, s59")
        if n < 6:
            A("  s_add_u32 s63, s63, 1")
            A("  s_cmp_eq_u32 s63, 7")
            A("  s_cselect_b32 s63, 0, s63")
    A("  s_lshr_b32 s59, s54, 1")
    A("  s_lshl_b32 s59, s59, 4")
    A("  v_mov_b32 v247, s59")

    ACC = lambda a, b: 16 + 16 * (2 * a + b)
    def SET(x):
        base = 80 + 16 * x
        return dict(A0=base, A1=base + 4, B0=base + 8, B1=base + 12)
    vB = [7, 8, 9, 10]

    def rdA(s, a, ks):
        r = s["A%d" % a]
        return [f"  ds_read_b64_tr_b16 v[{r}:{r+1}], v6 offset:{ks*4096 + a*256}",
                f"  ds_read_b64_tr_b16 v[{r+2}:{r+3}], v6 offset:{ks*4096 + 1024 + a*256}"]

    def rdB(s, b, ks):
        r = s["B%d" % b]
        return [f"  ds_read_b128 v[{r}:{r+3}], v{vB[ks]} offset:{b*4096}"]

    def mf(s, a, b):
        c = ACC(a, b)
        ra, rb = s["A%d" % a], s["B%d" % b]
        return f"  v_mfma_f32_32x32x16_bf16 v[{c}:{c+15}], v[{ra}:{ra+3}], v[{rb}:{rb+3}], v[{c}:{c+15}]"

    A("  s_mov_b32 s35, 0x8000")
    A("  s_mov_b32 s64, 0")
    A("  s_mov_b32 s65, 0")
    A("  s_barrier")
    stamp()
    s0, s1 = SET(0), SET(1)
    for x in rdA(s0, 0, 0) + rdB(s0, 0, 0) + rdB(s0, 1, 0) + rdA(s0, 1, 0):
        A(x)
    A("L_p1:")
    for ks in range(3):
        cur, nxt = (s0, s1) if ks % 2 == 0 else (s1, s0)
        A("  s_waitcnt lgkmcnt(3)")
        A(mf(cur, 0, 0))
        for x in rdA(nxt, 0, ks + 1): A(x)
        A("  s_waitcnt lgkmcnt(4)")
        A(mf(cur, 0, 1))
        for x in rdB(nxt, 0, ks + 1) + rdB(nxt, 1, ks + 1): A(x)
        A("  s_waitcnt lgkmcnt(4)")
        A(mf(cur, 1, 1))
        for x in rdA(nxt, 1, ks + 1): A(x)
        A(mf(cur, 1, 0))
    A("  s_add_u32 s65, s65, 1")
    A("  s_cmp_eq_u32 s65, 5")
    A("  s_cselect_b32 s59, 0xfffe0000, s35")
    A("  s_cselect_b32 s65, 0, s65")
    A("  s_waitcnt lgkmcnt(3)")
    A(mf(s1, 0, 0))
    A("  v_add_u32 v6, s59, v6")
    A("  v_add_u32 v7, s59, v7")
    A("  v_add_u32 v8, s59, v8")
    A("  v_add_u32 v9, s59, v9")
    A("  v_add_u32 v10, s59, v10")
    A("  s_waitcnt lgkmcnt(0)")
    A(mf(s1, 0, 1))
    A("  s_cmp_eq_u32 s64, 6")
    A("  s_cbranch_scc1 L_p1_last")
    A(f"  s_cmp_lg_u32 s64, {clear_at}")
    A("  s_cbranch_scc1 L_p1_bar")
    A("  s_waitcnt vmcnt(0)")
    A("  s_barrier")
    A("  s_cmp_lg_u32 s3, 0")
    A("  s_cbranch_scc1 L_p1_go")
    A("  buffer_atomic_add v245, v244, s[24:27], 0 offen sc1")
    A("  s_branch L_p1_go")
    A("L_p1_bar:")
    A("  s_barrier")
    A("L_p1_go:")
    for x in rdA(s0, 0, 0) + rdB(s0, 0, 0): A(x)
    A(mf(s1, 1, 1))
    for x in rdB(s0, 1, 0) + rdA(s0, 1, 0): A(x)
    A(mf(s1, 1, 0))
    A("  s_add_u32 s64, s64, 1")
    A("  s_branch L_p1")
    A("L_p1_last:")
    A(mf(s1, 1, 1))
    A(mf(s1, 1, 0))
    A("  s_nop 7")
    A("  s_nop 1")
    stamp()
    order = [(0, 0), (0, 1), (1, 1), (1, 0)]
    for idx, (a, b) in enumerate(order):
        c = ACC(a, b)
        p = 80 + 8 * idx
        for k in range(8):
            A(f"  v_cvt_pk_bf16_f32 v{p+k}, v{c+2*k}, v{c+2*k+1}")
        for k in range(8):
            A(f"  v_pk_max_i16 v{p+k}, v{p+k}, 0")
        for u2 in range(2):
            A(f"  buffer_store_dwordx4 v[{p+4*u2}:{p+4*u2+3}], v14, s[28:31], s{60+b} offen offset:{(2*a+u2)*1024} sc1")
    A("  buffer_load_dword v248, v247, s[24:27], 0 offen sc1")
    stamp()

    def w2read(dst, n2, t, t2):
        slot = (7 + n2) % 5
        base = [11, 11, 12, 12, 13][slot]
        so = (slot & 1) * 32768 if slot < 4 else 0
        return [f"  ds_read_b64_tr_b16 v[{dst+2*u}:{dst+2*u+1}], v{base} offset:{so + (2*t+u)*1024 + t2*256}" for u in range(2)]

    W2R = lambda n2, t, t2: 112 + 64 * n2 + 8 * t + 4 * t2
    for n2 in range(2):
        A("  s_barrier")
        for t in range(8):
            for t2 in range(2):
                for x in w2read(W2R(n2, t, t2), n2, t, t2): A(x)
            if t in (2, 5): A("  s_waitcnt lgkmcnt(4)")
        A("  s_waitcnt lgkmcnt(0)")
    A("  s_barrier")
    stamp()
    for k in range(32):
        A(f"  v_mov_b32 v{80+k}, 0")
    A("  s_mov_b32 s63, 0")
    A("L_cnt:")
    A("  s_waitcnt vmcnt(0)")
    A("  v_readfirstlane_b32 s59, v248")
    A("  s_cmp_ge_u32 s59, 14")
    A("  s_cbranch_scc1 L_cnt_ok")
    A("  s_add_u32 s63, s63, 1")
    A(f"  s_cmp_ge_u32 s63, {spin_max}")
    A("  s_cbranch_scc1 L_cnt_ok")
    A("  buffer_load_dword v248, v247, s[24:27], 0 offen sc1")
    A("  s_branch L_cnt")
    A("L_cnt_ok:")
    stamp()
    H = lambda t: 16 + 4 * (t % 16)

    def hload(t):
        n2, tt = divmod(t, 8)
        r = H(t)
        return f"  buffer_load_dwordx4 v[{r}:{r+3}], v{14 + (tt >> 2)}, s[28:31], s{hs[n2]} offen offset:{(tt & 3)*1024} sc1"

    for t in range(16): A(hload(t))
    ACC2 = lambda t2: 80 + 16 * t2
    PD = o.get("PD", 2)
    JIT = lambda t, t2: 112 + 8 * (t & 3) + 4 * t2
    retry = []
    lgk = []
    A("  s_mov_b32 s63, 0")
    for t in range(56):
        n2, tt = divmod(t, 8)
        if t % 2 == 0:
            issued = min(55, t + 15)
            A(f"  s_waitcnt vmcnt({issued - (t + 1)})")
            A(f"L_chk{t}:")
            h0, h1 = H(t), H(t + 1)
            A(f"  v_or3_b32 v2, v{h0}, v{h0+1}, v{h0+2}")
            A(f"  v_or3_b32 v3, v{h0+3}, v{h1}, v{h1+1}")
            A(f"  v_or3_b32 v2, v2, v{h1+2}, v{h1+3}")
            A("  v_or_b32 v2, v2, v3")
            A("  v_cmp_gt_i32 vcc, 0, v2")
            A(f"  s_cbranch_vccnz L_retry{t}")
            A(f"L_go{t}:")
            if t == 0: stamp()
            retry += [f"L_retry{t}:", "  s_add_u32 s63, s63, 1", f"  s_cmp_ge_u32 s63, {spin_max}", f"  s_cbranch_scc1 L_go{t}",
                      hload(t), hload(t + 1), "  s_waitcnt vmcnt(0)", f"  s_branch L_chk{t}"]
        if t == 16 - PD:
            A("  s_barrier")
        if t == 40:
            A("  s_barrier")
        nt = t + PD
        for t2 in range(2):
            if t >= 16:
                need = lgk.index((t, t2))
                A(f"  s_waitcnt lgkmcnt({2 * (len(lgk) - 1 - need)})")
                lgk = lgk[need + 1:]
                ra = JIT(t, t2)
            else:
                ra = W2R(n2, tt, t2)
            c = ACC2(t2)
            h = H(t)
            A(f"  v_mfma_f32_32x32x16_bf16 v[{c}:{c+15}], v[{ra}:{ra+3}], v[{h}:{h+3}], v[{c}:{c+15}]")
            if 16 <= nt < 56:
                for x in w2read(JIT(nt, t2), nt // 8, nt % 8, t2): A(x)
                lgk.append((nt, t2))
        if t + 16 < 56:
            A(hload(t + 16))
    stamp()
    A("  s_lshl_b32 s59, s3, 12")
    A("  s_add_u32 s59, s59, 0x20000")
    A("  v_add_u32 v4, s59, v14")
    A("  v_xor_b32 v5, 0x1000, v4")
    A("  s_lshl_b32 s59, s54, 6")
    A("  s_lshl_b32 s62, s58, 5")
    A("  s_add_u32 s59, s59, s62")
    A("  s_mul_i32 s59, s59, 896")
    A("  s_lshl_b32 s62, s51, 7")
    A("  s_add_u32 s59, s59, s62")
    A("  s_lshl_b32 s62, s57, 6")
    A("  s_add_u32 s59, s59, s62")
    A("  v_and_b32 v6, 31, v1")
    A("  v_mul_u32_u24 v6, 896, v6")
    A("  v_lshrrev_b32 v7, 5, v1")
    A("  v_lshl_add_u32 v6, v7, 3, v6")
    for q in range(4):
        A(f"  ds_write_b128 v4, v[{96+4*q}:{99+4*q}] offset:{q*1024}")
    A("  s_waitcnt lgkmcnt(0)")
    A("  s_barrier")
    for q in range(4):
        A(f"  ds_read_b128 v[{16+4*q}:{19+4*q}], v5 offset:{q*1024}")
    for q in range(4):
        A(f"  s_waitcnt lgkmcnt({3-q})")
        for k in range(4):
            A(f"  v_add_f32 v{16+4*q+k}, v{16+4*q+k}, v{80+4*q+k}")
        A(f"  v_cvt_pk_bf16_f32 v{32+2*q}, v{16+4*q}, v{17+4*q}")
        A(f"  v_cvt_pk_bf16_f32 v{33+2*q}, v{18+4*q}, v{19+4*q}")
        A(f"  buffer_store_dwordx2 v[{32+2*q}:{33+2*q}], v6, s[20:23], s59 offen offset:{q*16} {out_sc}")
    if stamps:
        A("  s_waitcnt vmcnt(0)")
        stamp()
        A("L_stamps:")
        A("  s_lshl_b32 s59, s2, 3")
        A("  s_add_u32 s59, s59, s3")
        A("  s_lshl_b32 s59, s59, 6")
        A(f"  s_add_u32 s59, s59, {HBYTES}")
        A("  v_mov_b32 v4, 0")
        for k in range(8):
            A(f"  s_sub_u32 s62, s{70+2*k}, s68")
            A("  v_mov_b32 v5, s62")
            A(f"  buffer_store_dword v5, v4, s[28:31], s59 offen offset:{4*k}")
        A("  v_mov_b32 v5, s66")
        A("  buffer_store_dword v5, v4, s[28:31], s59 offen offset:32")
        A("  v_mov_b32 v5, s63")
        A("  buffer_store_dword v5, v4, s[28:31], s59 offen offset:36")
        A("  s_memrealtime s[66:67]")
        A("  s_waitcnt lgkmcnt(0)")
        A("  v_mov_b32 v5, s66")
        A("  buffer_store_dword v5, v4, s[28:31], s59 offen offset:40")
    A("  s_endpgm")
    for x in retry: A(x)

    A("L_loader:")
    A("  s_sub_u32 s57, s3, 4")
    A("  v_lshrrev_b32 v2, 3, v1")
    A("  s_lshl_b32 s59, s57, 5")
    A("  v_add_u32 v2, s59, v2")
    A("  v_mul_u32_u24 v2, 896, v2")
    A("  v_lshrrev_b32 v3, 4, v1")
    A("  v_and_b32 v16, 7, v1")
    A("  v_xor_b32 v3, v3, v16")
    A("  v_xor_b32 v17, 4, v3")
    A("  v_lshl_add_u32 v4, v3, 4, v2")
    A("  v_lshl_add_u32 v5, v17, 4, v2")
    A(f"  v_add_u32 v6, {2*6144}, v4")
    A(f"  v_add_u32 v7, {3*6144}, v5")
    A(f"  v_add_u32 v5, {6144}, v5")
    A("  v_bfe_u32 v2, v1, 2, 2")
    A("  s_lshl_b32 s59, s57, 4")
    A("  v_add_u32 v3, s59, v2")
    A("  v_mul_u32_u24 v3, 3584, v3")
    A("  v_lshrrev_b32 v16, 4, v1")
    A("  v_lshl_add_u32 v3, v16, 6, v3")
    A("  v_and_b32 v17, 3, v1")
    A("  v_lshl_add_u32 v8, v17, 4, v3")
    for q in range(1, 4):
        A(f"  v_add_u32 v{8+q}, {q*13312}, v8")
    A("  s_mul_i32 s60, s52, 114688")
    A("  s_lshl_b32 s59, s55, 7")
    A("  s_add_u32 s60, s60, s59")
    A("  s_mul_i32 s61, s55, 229376")
    A("  s_lshl_b32 s59, s53, 8")
    A("  s_add_u32 s61, s61, s59")
    A("  s_mov_b32 s63, s55")
    A("  s_lshl_b32 s58, s57, 12")
    A("  s_waitcnt lgkmcnt(0)")
    A("  s_mov_b32 s8, s36")
    A("  s_mov_b32 s9, s37")
    A("  s_mov_b32 s10, 1835008")
    A("  s_mov_b32 s11, 0x20000")
    A("  s_mov_b32 s12, s38")
    A("  s_mov_b32 s13, s39")
    A("  s_mov_b32 s14, 1605632")
    A("  s_mov_b32 s15, 0x20000")

    def advance(da, db, wa, wb):
        A("  s_add_u32 s63, s63, 1")
        A("  s_cmp_eq_u32 s63, 7")
        A("  s_cselect_b32 s63, 0, s63")
        A(f"  s_cselect_b32 s59, {(wa - da) & 0xffffffff}, 0")
        A(f"  s_cselect_b32 s62, {(wb - db) & 0xffffffff}, 0")
        A(f"  s_add_u32 s60, s60, {da}")
        A(f"  s_add_u32 s61, s61, {db}")
        A("  s_add_u32 s60, s60, s59")
        A("  s_add_u32 s61, s61, s62")

    def issue(n):
        slot = n % 5
        if n == 7:
            A("  s_mul_i32 s60, s55, 114688")
            A("  s_lshl_b32 s59, s51, 7")
            A("  s_add_u32 s60, s60, s59")
            A(f"  s_add_u32 s61, s60, {896*896}")
            A("  s_mov_b32 s63, s55")
        A(f"  s_add_u32 m0, s58, {slot*32768}")
        A("  s_nop 0")
        for q in range(4):
            if n < 7: A(f"  buffer_load_dwordx4 v{4+q}, s[8:11], s60 offen offset:{q*1024} lds")
            else:     A(f"  buffer_load_dwordx4 v{12+q}, s[16:19], s60 offen offset:{q*1024} lds")
        A(f"  s_add_u32 m0, s58, {slot*32768 + 16384}")
        A("  s_nop 0")
        for q in range(4):
            if n < 7: A(f"  buffer_load_dwordx4 v{8+q}, s[12:15], s61 offen offset:{q*1024} lds")
            else:     A(f"  buffer_load_dwordx4 v{20+q}, s[16:19], s61 offen offset:{q*1024} lds")
        if n < 6: advance(128, 229376, -6*128, -6*229376)
        elif 7 <= n < 13: advance(114688, 114688, -6*114688, -6*114688)

    for n in range(D): issue(n)
    A("  v_lshrrev_b32 v2, 5, v1")
    A("  v_bfe_u32 v3, v1, 2, 2")
    A("  v_lshl_add_u32 v2, v2, 2, v3")
    A("  s_lshl_b32 s59, s57, 5")
    A("  v_add_u32 v2, s59, v2")
    A("  v_mul_u32_u24 v2, 896, v2")
    A("  v_and_b32 v3, 3, v1")
    A("  v_lshl_add_u32 v2, v3, 4, v2")
    A("  v_bfe_u32 v3, v1, 4, 1")
    A("  v_lshl_add_u32 v12, v3, 6, v2")
    A("  v_xor_b32 v3, 1, v3")
    A("  v_lshl_add_u32 v20, v3, 6, v2")
    for q in range(1, 4):
        A(f"  v_add_u32 v{12+q}, {q*6144}, v12")
        A(f"  v_add_u32 v{20+q}, {q*6144}, v20")
    A("  s_mov_b32 s16, s40")
    A("  s_mov_b32 s17, s41")
    A("  s_mov_b32 s18, 1605632")
    A("  s_mov_b32 s19, 0x20000")
    issued = D
    lst = []
    for n in range(9):
        A(f"  s_waitcnt vmcnt({8 * (issued - 1 - n)})")
        if stamps and n in (0, 3, 6, 8):
            k = len(lst); lst.append(n)
            A(f"  s_memtime s[{70+2*k}:{71+2*k}]")
        if issued <= 11 and issued <= n + D:
            issue(issued); issued += 1
        A("  s_barrier")
    while issued <= 12:
        issue(issued); issued += 1
    A("  s_barrier")
    issue(13)
    A("  s_waitcnt vmcnt(0)")
    if stamps:
        A("  s_memtime s[78:79]")
        A("  s_waitcnt lgkmcnt(0)")
    A("  s_barrier")
    if stamps:
        A("  s_mov_b32 s28, s46")
        A("  s_mov_b32 s29, s47")
        A(f"  s_mov_b32 s30, {HBYTES + (1 << 20)}")
        A("  s_mov_b32 s31, 0x20000")
        A("  s_branch L_stamps")
    A("L_end:")
    A("  s_endpgm")
    A('.section .rodata,"a"')
    A(".p2align 6")
    A(f".amdhsa_kernel {name}_kernel")
    A("  .amdhsa_next_free_vgpr 256")
    A("  .amdhsa_next_free_sgpr 96")
    A("  .amdhsa_accum_offset 256")
    A("  .amdhsa_group_segment_fixed_size 0")
    A("  .amdhsa_kernarg_size 48")
    A("  .amdhsa_user_sgpr_count 2")
    A("  .amdhsa_user_sgpr_kernarg_segment_ptr 1")
    A("  .amdhsa_system_sgpr_workgroup_id_x 1")
    A(".end_amdhsa_kernel")
    return "\n".join(L) + "\n"


if __name__ == "__main__":
    out = sys.argv[1] if len(sys.argv) > 1 else f"cdna_kernels/{NAME}.s"
    open(out, "w").write(gen())
```
